```python
import torch

def _softmax(x, axis=-1):
    return torch.softmax(x, dim=axis)
def _gelu(x):
    return torch.nn.functional.gelu(x, approximate="tanh")
def _silu(x):
    return torch.nn.functional.silu(x)
def _sigmoid(x):
    return torch.sigmoid(x)
def _layernorm(x, axis=-1, eps=1e-5):
    m = x.mean(dim=axis, keepdim=True)
    v = x.var(dim=axis, keepdim=True, unbiased=False)
    return (x - m) / torch.sqrt(v + eps)
def _scatter_add(tgt, idx, src, axis=0):
    return tgt.clone().index_add_(axis, idx, src)
def _segment_sum(src, seg, n):
    out = torch.zeros((n,) + src.shape[1:], dtype=src.dtype)
    return out.index_add_(0, seg, src)
def _pad(x, pw):
    flat = tuple(v for pair in reversed(pw) for v in pair)
    return torch.nn.functional.pad(x, flat)

kernel_name = 'gated_mix__linear_attn_block__dense_activation_mish__prompt'

def setup_inputs():

    _w = (lambda a: (lambda t: t.to(torch.bfloat16) if t.is_floating_point() else t)(torch.as_tensor(a)))
    def _A_setup():
        B, S, D = 1, 2048, 576
        return {
            "x": _w((lambda *s: torch.randn(*s, dtype=torch.bfloat16) * 0.05)(B, S, D)),
            "wqkv": _w((lambda *s: torch.randn(*s, dtype=torch.bfloat16) * 0.8)(D, 3 * D)),
            "wo": _w((lambda *s: torch.randn(*s, dtype=torch.bfloat16) * 0.05)(D, D)),
        }
    _A_in = _A_setup()

    def _B_setup():
        B, S, D, F = 1, 2048, 576, 4608
        return {
            "x": _w((lambda *s: torch.randn(*s, dtype=torch.bfloat16) * 0.05)(B, S, D)),
            "w1": _w((lambda *s: torch.randn(*s, dtype=torch.bfloat16) * 12.8)(D, F) * (D ** -0.5)),
            "b1": _w((lambda *s: torch.randn(*s, dtype=torch.bfloat16) * 0.2)(F)),
            "w2": _w((lambda *s: torch.randn(*s, dtype=torch.bfloat16) * 0.05)(F, D) * (F ** -0.5)),
        }
    _B_in = _B_setup()

    return {
        "A_x": _A_in["x"],
        "A_wqkv": _A_in["wqkv"],
        "A_wo": _A_in["wo"],
        "B_x": _B_in["x"],
        "B_w1": _B_in["w1"],
        "B_b1": _B_in["b1"],
        "B_w2": _B_in["w2"],
        "gate_w": _w((lambda *s: torch.randn(*s, dtype=torch.bfloat16) * 0.05)(576) * 16.0),
    }

def reference(A_x, A_wqkv, A_wo, B_x, B_w1, B_b1, B_w2, gate_w):
    def _A_ref(x, wqkv, wo):
        B, S, D = x.shape
        H = 32; Dh = D // H
        qkv = (lambda x, *d: x.permute(*d))((x @ wqkv).reshape(B, S, 3, H, Dh), 2, 0, 3, 1, 4)
        q, k, v = qkv[0], qkv[1], qkv[2]
        phi = lambda t: torch.where(t > 0, t + 1, torch.exp(t)) + 1e-6
        pq, pk = phi(q), phi(k)
        kv = torch.einsum("bhsd,bhse->bhde", pk, v)
        z = torch.einsum("bhsd->bhd", pk)
        num = torch.einsum("bhqd,bhde->bhqe", pq, kv)
        den = torch.einsum("bhqd,bhd->bhq", pq, z)[..., None] + 1e-6
        o = num / den
        return (lambda x, *d: x.permute(*d))(o, 0, 2, 1, 3).reshape(B, S, D) @ wo

    def _B_ref(x, w1, b1, w2):
        h = torch.einsum("bsd,df->bsf", x, w1) + b1
        sp = torch.log1p(torch.exp(-torch.abs(h))) + torch.where(h > 0, h, torch.zeros_like(h))
        act = h * torch.tanh(sp)
        return torch.einsum("bsf,fd->bsd", act, w2)

    x = A_x
    g = _sigmoid((x * gate_w).sum(-1, keepdims=True))
    a = _A_ref(x, A_wqkv, A_wo)
    b = _B_ref(x, B_w1, B_b1, B_w2)
    return g * a + (1 - g) * b
```

```python
import sys
from mblib import *
def dump():
    s = """
    s_waitcnt vmcnt(0) lgkmcnt(0)
    s_cmp_lg_u32 s24, 0
    s_cbranch_scc1 L_end
    s_lshl_b32 s25, s2, 8
    v_mov_b32 v3, s25
    v_cmp_eq_u32 vcc, 0, v2
    s_and_saveexec_b64 s[26:27], vcc
"""
    for i in range(16):
        b = 36 + 4 * i
        s += f"    v_mov_b32 v4, s{b}\n    v_mov_b32 v5, s{b+1}\n    v_mov_b32 v6, s{b+2}\n    v_mov_b32 v7, s{b+3}\n"
        s += f"    buffer_store_dwordx4 v[4:7], v3, s[20:23], 0 offen offset:{16*i}\n    s_nop 1\n"
    s += "    s_waitcnt vmcnt(0)\nL_end:\n    s_endpgm\n"
    return s
def gen(name, shape, order, waves=4, nA=4, nB=4, seg_mfma32=64, agprB=False, agprC=False, gap=0):
    s = HEAD.format(grid=256, block=waves*64, lds=0)
    flops = 256 * waves * seg_mfma32 * 32768.0
    s = f"; FLOPSEG {flops}\n" + s
    s = s.replace("; FLOPSEG", "; FLOPSEG")
    s += prologue()
    NF = 16
    A0, B0 = 16, 16 + 4 * NF
    s += "    v_lshlrev_b32 v3, 4, v0\n    s_lshl_b32 s34, s2, 16\n"
    for i in range(NF):
        s += f"    buffer_load_dwordx4 v[{A0+4*i}:{A0+4*i+3}], v3, s[12:15], s34 offen\n    s_add_u32 s34, s34, 8192\n"
    for i in range(NF):
        d = f"a[{128+4*i}:{128+4*i+3}]" if agprB else f"v[{B0+4*i}:{B0+4*i+3}]"
        s += f"    buffer_load_dwordx4 {d}, v3, s[12:15], s34 offen\n    s_add_u32 s34, s34, 8192\n"
    C0 = 144
    cw = 16 if shape == 32 else 4
    for i in range(96 if not agprC else 128):
        s += f"    v_accvgpr_write_b32 a{i}, 0\n" if agprC else f"    v_mov_b32 v{C0+i}, 0\n"
    s += "    s_waitcnt vmcnt(0)\n    s_barrier\n"
    op = "v_mfma_f32_32x32x16_bf16" if shape == 32 else "v_mfma_f32_16x16x32_bf16"
    n = seg_mfma32 * (1 if shape == 32 else 2)
    def creg(j):
        if agprC: return f"a[{j*cw}:{j*cw+cw-1}]"
        return f"v[{C0+j*cw}:{C0+j*cw+cw-1}]"
    def breg(i):
        return f"a[{128+4*i}:{128+4*i+3}]" if agprB else f"v[{B0+4*i}:{B0+4*i+3}]"
    seq = []
    if order == "chain":
        for i in range(n):
            seq.append((i % NF, (i * 5 + i // NF) % NF, 0))
    elif order == "rot":
        nacc = nA * nB
        for i in range(n):
            seq.append((i % NF, (i * 5 + i // NF) % NF, i % nacc))
    elif order == "outer":
        i = 0; ks = 0
        while len(seq) < n:
            for a in range(nA):
                for b in range(nB):
                    seq.append(((ks * nA + a) % NF, (ks * nB + b) % NF, a * nB + b))
            ks += 1
        seq = seq[:n]
    elif order == "outerB":
        ks = 0
        while len(seq) < n:
            for b in range(nB):
                for a in range(nA):
                    seq.append(((ks * nA + a) % NF, (ks * nB + b) % NF, a * nB + b))
            ks += 1
        seq = seq[:n]
    body = ""
    for (a, b, c) in seq:
        body += f"    {op} {creg(c)}, v[{A0+4*a}:{A0+4*a+3}], {breg(b)}, {creg(c)}\n"
        if gap: body += f"    s_nop {gap-1}\n"
    for seg in range(16):
        r = 36 + 4 * seg
        s += f"    s_memtime s[{r}:{r+1}]\n    s_memrealtime s[{r+2}:{r+3}]\n"
        if seg < 15: s += body
    s += "    s_nop 15\n"
    s += dump()
    s += TAIL.format(nfv=512 if waves == 4 else 256, acc=256 if waves == 4 else 256)
    open(name, "w").write(s)
    return name
if __name__ == "__main__":
    N = []
    N.append(gen("mb5_32_chain.s", 32, "chain"))
    N.append(gen("mb5_32_rot.s", 32, "rot", nA=2, nB=2))
    N.append(gen("mb5_32_outer12.s", 32, "outer", nA=1, nB=2))
    N.append(gen("mb5_32_outer23.s", 32, "outer", nA=2, nB=3))
    N.append(gen("mb5_32_outerB32.s", 32, "outerB", nA=3, nB=2))
    N.append(gen("mb5_32_chain_agB.s", 32, "chain", agprB=True))
    N.append(gen("mb5_32_chain_agC.s", 32, "chain", agprC=True))
    N.append(gen("mb5_16_chain.s", 16, "chain"))
    N.append(gen("mb5_16_rot.s", 16, "rot", nA=2, nB=2))
    N.append(gen("mb5_16_outer12.s", 16, "outer", nA=1, nB=2))
    N.append(gen("mb5_16_outer14.s", 16, "outer", nA=1, nB=4))
    N.append(gen("mb5_16_outer44.s", 16, "outer", nA=4, nB=4))
    N.append(gen("mb5_16_outerB44.s", 16, "outerB", nA=4, nB=4))
    N.append(gen("mb5_16_chain_w8.s", 16, "chain", waves=8, seg_mfma32=32))
    N.append(gen("mb5_32_chain_w8.s", 32, "chain", waves=8, seg_mfma32=32))
    print(" ".join(N))
```

```python
HEAD = """; @launch grid=({grid},1,1) block=({block},1,1) lds={lds}
.amdgcn_target "amdgcn-amd-amdhsa--gfx950"
.text
.globl mb_kernel
.p2align 8
.type mb_kernel,@function
mb_kernel:
"""
TAIL = """
.section .rodata,"a"
.p2align 6
.amdhsa_kernel mb_kernel
  .amdhsa_next_free_vgpr {nfv}
  .amdhsa_next_free_sgpr 102
  .amdhsa_accum_offset {acc}
  .amdhsa_group_segment_fixed_size 0
  .amdhsa_kernarg_size 24
  .amdhsa_user_sgpr_count 2
  .amdhsa_user_sgpr_kernarg_segment_ptr 1
  .amdhsa_system_sgpr_workgroup_id_x 1
.end_amdhsa_kernel
"""
def prologue():
    return """
    s_load_dwordx4 s[4:7], s[0:1], 0
    s_load_dwordx2 s[8:9], s[0:1], 16
    s_waitcnt lgkmcnt(0)
    s_mov_b32 s12, s4
    s_mov_b32 s13, s5
    s_mov_b32 s14, 0x4000000
    s_mov_b32 s15, 0x20000
    s_mov_b32 s16, s6
    s_mov_b32 s17, s7
    s_mov_b32 s18, 0x4000000
    s_mov_b32 s19, 0x20000
    s_mov_b32 s20, s8
    s_mov_b32 s21, s9
    s_mov_b32 s22, 0x100000
    s_mov_b32 s23, 0x20000
    v_lshrrev_b32 v1, 6, v0
    s_nop 0
    v_readfirstlane_b32 s24, v1
    v_and_b32 v2, 63, v0             ; lane
"""
def stamp_start():
    return """
    s_memtime s[90:91]
    s_memrealtime s[92:93]
    s_waitcnt lgkmcnt(0)
"""
def stamp_end():
    return """
    s_waitcnt vmcnt(0) lgkmcnt(0)
    s_barrier
    s_memtime s[94:95]
    s_memrealtime s[96:97]
    s_waitcnt lgkmcnt(0)
    s_cmp_lg_u32 s24, 0
    s_cbranch_scc1 L_end
    v_mov_b32 v4, s90
    v_mov_b32 v5, s91
    v_mov_b32 v6, s94
    v_mov_b32 v7, s95
    v_mov_b32 v8, s92
    v_mov_b32 v9, s93
    v_mov_b32 v10, s96
    v_mov_b32 v11, s97
    s_lshl_b32 s25, s2, 6
    v_mov_b32 v3, s25
    v_cmp_eq_u32 vcc, 0, v2
    s_and_saveexec_b64 s[26:27], vcc
    buffer_store_dwordx4 v[4:7], v3, s[20:23], 0 offen
    buffer_store_dwordx4 v[8:11], v3, s[20:23], 0 offen offset:16
    s_waitcnt vmcnt(0)
L_end:
    s_endpgm
"""
```

```python
import sys
from mblib import *
from gen_mb5 import dump
def gen(name, waves, mode, kb=2, pre=False, hop=0):
    s = HEAD.format(grid=256, block=waves*64, lds=0)
    s = "; FLOPSEG 1\n" + s
    s += prologue()
    n = kb * 1024 // 8
    if pre:
        s += "    s_getpc_b64 s[30:31]\n    v_and_b32 v9, 127, v0\n    v_lshlrev_b32 v9, 7, v9\n    global_load_dword v10, v9, s[30:31]\n    s_waitcnt vmcnt(0)\n"
    s += "    s_mov_b32 s33, 0\n"
    if mode == "split":
        s += "    s_memtime s[98:99]\n"
        s += "    s_mov_b64 exec, 0\n"
        for w in range(7):
            s += f"    s_cmp_eq_u32 s24, {w}\n    s_cbranch_scc1 L_seg{w}\n"
        s += "L_back:\n    s_mov_b64 exec, -1\n    s_barrier\n"
    s += "L_top:\n"
    for seg in range(7):
        r = 36 + 4 * seg
        s += f"    s_cmp_eq_u32 s33, 0\n    s_cbranch_scc0 L_p2_{seg}\n    s_memtime s[{r}:{r+1}]\n    s_memrealtime s[{r+2}:{r+3}]\n    s_branch L_c_{seg}\nL_p2_{seg}:\n"
        r = 36 + 4 * (seg + 8)
        s += f"    s_memtime s[{r}:{r+1}]\n    s_memrealtime s[{r+2}:{r+3}]\nL_c_{seg}:\n"
        s += f".p2align 7\nL_seg{seg}:\n"
        per = hop // 8 if hop else n
        for i in range(n):
            if hop and i % per == 0:
                last = (i + per >= n)
                s += f"L_h{seg}_{i}:\n    s_cbranch_execz {'L_back' if last else f'L_h{seg}_{i+per}'}\n    s_nop 0\n"
            else:
                s += f"    v_add3_u32 v{16 + i % 8}, v2, v2, v2\n"
        if mode == "split" and not hop:
            s += "    s_cbranch_execz L_back\n"
    s += f"    s_cmp_eq_u32 s33, 0\n    s_cbranch_scc0 L_fin\n    s_memtime s[64:65]\n    s_memrealtime s[66:67]\n    s_mov_b32 s33, 1\n    s_branch L_top\nL_fin:\n"
    s += "    s_memtime s[96:97]\n"
    if mode != "split": s += "    s_memrealtime s[98:99]\n"
    s += dump()
    s += TAIL.format(nfv=64, acc=64)
    open(name, "w").write(s)
    return name
N = []
N.append(gen("mb7_w1.s", 1, "same"))
N.append(gen("mb7_w4.s", 4, "same"))
N.append(gen("mb7_w8.s", 8, "same"))
N.append(gen("mb7_w8_pre.s", 8, "same", pre=True))
N.append(gen("mb7_w8_split.s", 8, "split"))
N.append(gen("mb7_w8_hop64.s", 8, "split", hop=64))
N.append(gen("mb7_w8_hop128.s", 8, "split", hop=128))
N.append(gen("mb7_w8_hop256.s", 8, "split", hop=256))
N.append(gen("mb7_w8_hop64_pre.s", 8, "split", hop=64, pre=True))
N.append(gen("mb7_w8_k4.s", 8, "same", kb=4))
N.append(gen("mb7_w8_k8.s", 8, "same", kb=8))
N.append(gen("mb7_w8_k10.s", 8, "same", kb=10))
print(" ".join(N))
```
